```python
import torch

def _softmax(x, axis=-1):
    return torch.softmax(x, dim=axis)

def _gelu(x):
    return torch.nn.functional.gelu(x, approximate='tanh')

def _silu(x):
    return torch.nn.functional.silu(x)

def _sigmoid(x):
    return torch.sigmoid(x)

def _layernorm(x, axis=-1, eps=1e-05):
    m = x.mean(dim=axis, keepdim=True)
    v = x.var(dim=axis, keepdim=True, unbiased=False)
    return (x - m) / torch.sqrt(v + eps)

def _scatter_add(tgt, idx, src, axis=0):
    return tgt.clone().index_add_(axis, idx, src)

def _segment_sum(src, seg, n):
    out = torch.zeros((n,) + src.shape[1:], dtype=src.dtype)
    return out.index_add_(0, seg, src)

def _pad(x, pw):
    flat = tuple((v for pair in reversed(pw) for v in pair))
    return torch.nn.functional.pad(x, flat)
kernel_name = 'adaLN_cond__memory_aug_recurrent_mem_tr__moe_arch_mod__prompt'

def setup_inputs():

    _w = lambda a: (lambda t: t.to(torch.bfloat16) if t.is_floating_point() else t)(torch.as_tensor(a))

    def _A_setup():
        B, S, Dm = (1, 2048, 640)
        H, Dh = (32, 192)
        M, seg = (8, 32)
        seg = min(seg, S)
        S = S // seg * seg
        return {'x': _w((lambda *s: torch.randn(*s, dtype=torch.bfloat16) * 0.05)(B, S, Dm)), 'mem0': _w((lambda *s: torch.randn(*s, dtype=torch.bfloat16) * 0.4)(B, M, Dm)), 'Wq': _w((lambda *s: torch.randn(*s, dtype=torch.bfloat16) * 3.2)(Dm, H, Dh) * Dm ** (-0.5)), 'Wk': _w((lambda *s: torch.randn(*s, dtype=torch.bfloat16) * 3.2)(Dm, H, Dh) * Dm ** (-0.5)), 'Wv': _w((lambda *s: torch.randn(*s, dtype=torch.bfloat16) * 0.4)(Dm, H, Dh) * Dm ** (-0.5)), 'Wo': _w((lambda *s: torch.randn(*s, dtype=torch.bfloat16) * 0.4)(H, Dh, Dm) * (H * Dh) ** (-0.5)), 'seg_len': seg}
    _A_in = _A_setup()

    def _B_setup():
        B, S, D, F, C = (1, 2048, 640, 1536, 8)
        return {'x': _w((lambda *s: torch.randn(*s, dtype=torch.bfloat16) * 0.05)(B, S, D)), 'w_r': _w((lambda *s: torch.randn(*s, dtype=torch.bfloat16) * 0.05)(D)), 'w_gate': _w((lambda *s: torch.randn(*s, dtype=torch.bfloat16) * 0.05)(D, F)), 'w_up': _w((lambda *s: torch.randn(*s, dtype=torch.bfloat16) * 0.05)(D, F)), 'w_down': _w((lambda *s: torch.randn(*s, dtype=torch.bfloat16) * 0.05)(F, D))}
    _B_in = _B_setup()
    return {'A_x': _A_in['x'], 'A_mem0': _A_in['mem0'], 'A_Wq': _A_in['Wq'], 'A_Wk': _A_in['Wk'], 'A_Wv': _A_in['Wv'], 'A_Wo': _A_in['Wo'], 'A_seg_len': _A_in['seg_len'], 'B_x': _B_in['x'], 'B_w_r': _B_in['w_r'], 'B_w_gate': _B_in['w_gate'], 'B_w_up': _B_in['w_up'], 'B_w_down': _B_in['w_down'], 'c': _w((lambda *s: torch.randn(*s, dtype=torch.bfloat16) * 0.05)(1, 640) * 8.0), 'w_mod': _w((lambda *s: torch.randn(*s, dtype=torch.bfloat16) * 0.05)(640, 6 * 640) * 640 ** (-0.5) * 8.0)}

def reference(A_x, A_mem0, A_Wq, A_Wk, A_Wv, A_Wo, A_seg_len, B_x, B_w_r, B_w_gate, B_w_up, B_w_down, c, w_mod):

    def _A_ref(x, mem0, Wq, Wk, Wv, Wo, seg_len):
        B, S, Dm = x.shape
        H, Dh = (Wq.shape[1], Wq.shape[2])
        M = mem0.shape[1]
        scale = Dh ** (-0.5)
        n_seg = S // seg_len
        L = M + seg_len
        idx = torch.arange(L)
        mask = (idx[:, None] < M) | (idx[:, None] >= idx[None, :])
        mem = mem0
        outs = []
        for s in range(n_seg):
            xs = x[:, s * seg_len:(s + 1) * seg_len, :].clone()
            h = torch.concatenate([mem, xs], axis=1)
            q = torch.einsum('btd,dhe->bhte', h, Wq)
            k = torch.einsum('btd,dhe->bhte', h, Wk)
            v = torch.einsum('btd,dhe->bhte', h, Wv)
            scores = torch.einsum('bhqe,bhke->bhqk', q, k) * scale
            scores = torch.where(mask[None, None], scores, -1000000000.0)
            p = _softmax(scores, axis=-1)
            o = torch.einsum('bhqk,bhke->bhqe', p, v)
            o = torch.einsum('bhte,hed->btd', o, Wo)
            mem = o[:, :M, :].clone()
            outs.append(o[:, M:, :])
        return torch.concatenate(outs, axis=1)

    def _B_ref(x, w_r, w_gate, w_up, w_down):
        B, S, D = x.shape
        C = 8
        r = x @ w_r
        idx = torch.argsort(-r, axis=-1)[:, :C]
        idx_e = (lambda x, n, axis: torch.repeat_interleave(x, n, dim=axis))(idx.reshape(B, C, 1), D, axis=2)
        x_sel = (lambda x, i, axis: torch.take_along_dim(x, i, dim=axis))(x, idx_e, axis=1)
        g = _silu(x_sel @ w_gate)
        u = x_sel @ w_up
        y = g * u @ w_down
        r_sel = _sigmoid((lambda x, i, axis: torch.take_along_dim(x, i, dim=axis))(r, idx, axis=1))
        y = y * r_sel.reshape(B, C, 1)
        b_off = (torch.arange(B) * S).reshape(B, 1)
        flat_idx = (idx + b_off).reshape(B * C)
        zero = (x * 0.0).reshape(B * S, D)
        upd = _scatter_add(zero, flat_idx, y.reshape(B * C, D), axis=0)
        return x + upd.reshape(B, S, D)
    x = A_x
    mod = (_silu(c) @ w_mod).reshape(c.shape[0], 6, 1, -1)
    sa, ca, ga, sb, cb, gb = (mod[:, 0].clone(), mod[:, 1].clone(), mod[:, 2].clone(), mod[:, 3].clone(), mod[:, 4].clone(), mod[:, 5].clone())
    h = _layernorm(x, axis=-1) * (1 + ca) + sa
    x = x + ga * _A_ref(h, A_mem0, A_Wq, A_Wk, A_Wv, A_Wo, A_seg_len)
    h = _layernorm(x, axis=-1) * (1 + cb) + sb
    x = x + gb * _B_ref(h, B_w_r, B_w_gate, B_w_up, B_w_down)
    return x
```

```python
import sys
def kern(name, body, n=200, pre=""):
    s = f"""
.globl {name}
.p2align 8
.type {name},@function
{name}:
    s_cmp_ge_u32 s2, 1
    s_cbranch_scc1 L_done_{name}
    s_load_dwordx2 s[8:9], s[0:1], 8
    s_load_dwordx2 s[14:15], s[0:1], 16
    v_mov_b32 v3, 0
    v_mov_b32 v31, 0
    s_mov_b32 s10, 256
    s_mov_b32 s11, 0x20000
    v_mov_b32 v20, 0x4444
    v_lshlrev_b32 v21, 4, v0
    v_and_b32 v22, 63, v0
    v_lshlrev_b32 v22, 3, v22
    s_waitcnt lgkmcnt(0)
    s_mov_b64 exec, 1
{pre}
    s_memtime s[4:5]
    s_waitcnt lgkmcnt(0)
"""
    for i in range(n):
        s += "    " + body(i) + "\n"
    s += f"""
    s_memtime s[6:7]
    s_waitcnt lgkmcnt(0)
    s_sub_u32 s4, s6, s4
    v_mov_b32 v2, s4
    v_mov_b32 v3, 0
    buffer_store_dword v2, v3, s[8:11], 0 offen
    s_waitcnt vmcnt(0)
L_done_{name}:
    s_endpgm
"""
    d = f"""
.p2align 6
.amdhsa_kernel {name}
  .amdhsa_next_free_vgpr 512
  .amdhsa_next_free_sgpr 32
  .amdhsa_accum_offset 256
  .amdhsa_group_segment_fixed_size 0
  .amdhsa_kernarg_size 24
  .amdhsa_user_sgpr_count 2
  .amdhsa_user_sgpr_kernarg_segment_ptr 1
  .amdhsa_system_sgpr_workgroup_id_x 1
.end_amdhsa_kernel
"""
    return s, d
SM = lambda i, d=24: f"v_smfmac_f32_16x16x64_bf16 v[{d}:{d+3}], v[8:11], a[{8*(i%30)}:{7+8*(i%30)}], v20"
ks = [
 ("g1", lambda i: "s_load_dword s12, s[14:15], 0 glc\n s_waitcnt lgkmcnt(0)"),
 ("g4same", lambda i: "\n ".join(f"s_load_dword s12, s[14:15], 0 glc" for k in range(4)) + "\n s_waitcnt lgkmcnt(0)"),
 ("g4d64", lambda i: "\n ".join(f"s_load_dword s12, s[14:15], {64*k} glc" for k in range(4)) + "\n s_waitcnt lgkmcnt(0)"),
 ("g4d128", lambda i: "\n ".join(f"s_load_dword s12, s[14:15], {128*k} glc" for k in range(4)) + "\n s_waitcnt lgkmcnt(0)"),
 ("g8d256", lambda i: "\n ".join(f"s_load_dword s12, s[14:15], {256*k} glc" for k in range(8)) + "\n s_waitcnt lgkmcnt(0)"),
 ("g1x8", lambda i: "s_load_dwordx8 s[16:23], s[14:15], 0 glc\n s_waitcnt lgkmcnt(0)"),
 ("g1far", lambda i: "s_load_dword s12, s[14:15], 8192 glc\n s_waitcnt lgkmcnt(0)"),
 ("at1", lambda i: "global_atomic_or v30, v3, v31, s[14:15] sc0 sc1\n s_waitcnt vmcnt(0)"),
 ("at1b", lambda i: "global_atomic_or v30, v3, v31, s[14:15] sc0\n s_waitcnt vmcnt(0)"),
 ("at4", lambda i: "\n ".join("global_atomic_or v30, v3, v31, s[14:15] sc0 sc1" for k in range(4)) + "\n s_waitcnt vmcnt(0)"),
 ("ldnt", lambda i: "global_load_dword v30, v3, s[14:15] sc0 sc1 nt\n s_waitcnt vmcnt(0)"),
 ("ldsc", lambda i: "global_load_dword v30, v3, s[14:15] sc0 sc1\n s_waitcnt vmcnt(0)"),
 ("ldnt1", lambda i: "global_load_dword v30, v3, s[14:15] sc1 nt\n s_waitcnt vmcnt(0)"),
]
out = "".join(f"; @launch kernel={n}_kernel grid=(1,1,1) block=(64,1,1) lds=16384\n" for n, _ in ks)
out += '.amdgcn_target "amdgcn-amd-amdhsa--gfx950"\n.text\n'
ds = '.section .rodata,"a"\n'
for n, b in ks:
    s, d = kern(n + "_kernel", b); out += s; ds += d
p = "rate_t.s"
open(p, "w").write(out + ds)
if len(sys.argv) > 1:
    sys.path.insert(0, "tools")
    from asmrun import *
    r = Runner(p, [], 4096, ws_nbytes=1 << 20)
    for it in range(2):
        r.run()
        d = r.dbg_read()
    for i, (n, _) in enumerate(ks): print(n, int(d[i*128])/200.0)
```
